```python
import torch

def _softmax(x, axis=-1):
    return torch.softmax(x, dim=axis)

def _gelu(x):
    return torch.nn.functional.gelu(x, approximate='tanh')

def _silu(x):
    return torch.nn.functional.silu(x)

def _sigmoid(x):
    return torch.sigmoid(x)

def _layernorm(x, axis=-1, eps=1e-05):
    m = x.mean(dim=axis, keepdim=True)
    v = x.var(dim=axis, keepdim=True, unbiased=False)
    return (x - m) / torch.sqrt(v + eps)

def _scatter_add(tgt, idx, src, axis=0):
    return tgt.clone().index_add_(axis, idx, src)

def _segment_sum(src, seg, n):
    out = torch.zeros((n,) + src.shape[1:], dtype=src.dtype)
    return out.index_add_(0, seg, src)

def _pad(x, pw):
    flat = tuple((v for pair in reversed(pw) for v in pair))
    return torch.nn.functional.pad(x, flat)
kernel_name = 'recurrent_scan__memory_aug_recurrent_mem_tr__mixer_s_mlp__prompt'

def setup_inputs():

    _w = lambda a: (lambda t: t.to(torch.bfloat16) if t.is_floating_point() else t)(torch.as_tensor(a))

    def _A_setup():
        B, S, Dm = (1, 2048, 1024)
        H, Dh = (32, 128)
        M, seg = (8, 32)
        seg = min(seg, S)
        S = S // seg * seg
        return {'x': _w((lambda *s: torch.randn(*s, dtype=torch.bfloat16) * 0.05)(B, S, Dm)), 'mem0': _w((lambda *s: torch.randn(*s, dtype=torch.bfloat16) * 0.2)(B, M, Dm)), 'Wq': _w((lambda *s: torch.randn(*s, dtype=torch.bfloat16) * 1.6)(Dm, H, Dh) * Dm ** (-0.5)), 'Wk': _w((lambda *s: torch.randn(*s, dtype=torch.bfloat16) * 1.6)(Dm, H, Dh) * Dm ** (-0.5)), 'Wv': _w((lambda *s: torch.randn(*s, dtype=torch.bfloat16) * 0.2)(Dm, H, Dh) * Dm ** (-0.5)), 'Wo': _w((lambda *s: torch.randn(*s, dtype=torch.bfloat16) * 0.2)(H, Dh, Dm) * (H * Dh) ** (-0.5)), 'seg_len': seg}
    _A_in = _A_setup()

    def _B_setup():
        B, S, D, F = (1, 2048, 1024, 3584)
        return {'x': _w((lambda *s: torch.randn(*s, dtype=torch.bfloat16) * 0.05)(B, S, D)), 'w1': _w((lambda *s: torch.randn(*s, dtype=torch.bfloat16) * 3.2)(D, D) * D ** (-0.5)), 'w2': _w((lambda *s: torch.randn(*s, dtype=torch.bfloat16) * 3.2)(D, D) * D ** (-0.5)), 'w3': _w((lambda *s: torch.randn(*s, dtype=torch.bfloat16) * 3.2)(D, F) * D ** (-0.5)), 'w4': _w((lambda *s: torch.randn(*s, dtype=torch.bfloat16) * 3.2)(F, D) * F ** (-0.5))}
    _B_in = _B_setup()
    return {'A_x': _A_in['x'], 'A_mem0': _A_in['mem0'], 'A_Wq': _A_in['Wq'], 'A_Wk': _A_in['Wk'], 'A_Wv': _A_in['Wv'], 'A_Wo': _A_in['Wo'], 'A_seg_len': _A_in['seg_len'], 'B_x': _B_in['x'], 'B_w1': _B_in['w1'], 'B_w2': _B_in['w2'], 'B_w3': _B_in['w3'], 'B_w4': _B_in['w4']}

def reference(A_x, A_mem0, A_Wq, A_Wk, A_Wv, A_Wo, A_seg_len, B_x, B_w1, B_w2, B_w3, B_w4):

    def _A_ref(x, mem0, Wq, Wk, Wv, Wo, seg_len):
        B, S, Dm = x.shape
        H, Dh = (Wq.shape[1], Wq.shape[2])
        M = mem0.shape[1]
        scale = Dh ** (-0.5)
        n_seg = S // seg_len
        L = M + seg_len
        idx = torch.arange(L)
        mask = (idx[:, None] < M) | (idx[:, None] >= idx[None, :])
        mem = mem0
        outs = []
        for s in range(n_seg):
            xs = x[:, s * seg_len:(s + 1) * seg_len, :].clone()
            h = torch.concatenate([mem, xs], axis=1)
            q = torch.einsum('btd,dhe->bhte', h, Wq)
            k = torch.einsum('btd,dhe->bhte', h, Wk)
            v = torch.einsum('btd,dhe->bhte', h, Wv)
            scores = torch.einsum('bhqe,bhke->bhqk', q, k) * scale
            scores = torch.where(mask[None, None], scores, -1000000000.0)
            p = _softmax(scores, axis=-1)
            o = torch.einsum('bhqk,bhke->bhqe', p, v)
            o = torch.einsum('bhte,hed->btd', o, Wo)
            mem = o[:, :M, :].clone()
            outs.append(o[:, M:, :])
        return torch.concatenate(outs, axis=1)

    def _B_ref(x, w1, w2, w3, w4):
        B, S, D = x.shape
        h = _gelu(_layernorm(x, axis=-1) @ w1)
        c = D // 4
        g0 = _pad(h[:, :, 0 * c:1 * c], ((0, 0), (1, 0), (0, 0)))[:, :S, :]
        g1 = _pad(h[:, :, 1 * c:2 * c], ((0, 0), (0, 1), (0, 0)))[:, 1:, :]
        g2 = _pad(h[:, :, 2 * c:3 * c], ((0, 0), (2, 0), (0, 0)))[:, :S, :]
        g3 = _pad(h[:, :, 3 * c:], ((0, 0), (0, 2), (0, 0)))[:, 2:, :]
        hs = torch.concatenate([g0, g1, g2, g3], axis=-1) @ w2
        x1 = x + hs
        h2 = _gelu(_layernorm(x1, axis=-1) @ w3) @ w4
        return x1 + h2
    x = A_x
    xn = _layernorm(x, axis=-1)
    s = _A_ref(xn, A_mem0, A_Wq, A_Wk, A_Wv, A_Wo, A_seg_len)
    g = _silu(_B_ref(xn, B_w1, B_w2, B_w3, B_w4))
    return x + s * g
```

```python
import sys
def build(sn, out="tm.cpp"):
    clob = ",".join(f'"v{i}"' for i in range(8, 256)) + "," + ",".join(f'"a{i}"' for i in range(256)) + "," + ",".join(f'"s{i}"' for i in range(40, 90))
    src = ['#include <hip/hip_runtime.h>', '#include <cstdio>', '#include <algorithm>']
    for i, (name, pre, body) in enumerate(sn):
        txt = "s_mov_b64 s[52:53], %3\n s_mov_b32 s54, 0x100000\n s_mov_b32 s55, 0x20000\n s_mov_b32 s41, 3\n v_mov_b32 v8, %2\n v_lshlrev_b32 v116, 4, v8\n v_and_b32 v116, 0x3f0, v116\n v_lshrrev_b32 v9, 6, v8\n s_nop 1\n v_readfirstlane_b32 s44, v9\n v_lshlrev_b32 v114, 11, v9\n v_add_u32 v114, v114, v116\n" \
              "v_lshrrev_b32 v115, 1, v9\n v_lshlrev_b32 v115, 10, v115\n v_add_u32 v115, v115, v116\n v_and_b32 v9, 1, v9\n v_lshl_add_u32 v115, v9, 3, v115\n v_mov_b32 v112, 0x4444\n" \
              ".p2align 6\n 9:\n" + pre + "\n s_waitcnt vmcnt(0) lgkmcnt(0)\n s_nop 15\n s_nop 15\n s_barrier\n s_memtime s[46:47]\n s_waitcnt lgkmcnt(0)\n" + body + \
              "\n s_memtime s[48:49]\n s_waitcnt vmcnt(0) lgkmcnt(0)\n s_sub_u32 s41, s41, 1\n s_cbranch_scc0 9b\n s_sub_u32 %0, s48, s46\n s_mov_b32 %1, s50\n"
        lines = "".join(f'    "{l.strip()}\\n"\n' for l in txt.split("\n") if l.strip())
        src.append(f'__global__ void __launch_bounds__(256) __attribute__((amdgpu_waves_per_eu(1,1))) k{i}(unsigned* o) {{\n  unsigned r, r2;\n  asm volatile(\n{lines}    : "=s"(r), "=s"(r2) : "v"(threadIdx.x), "s"(o + 1024) : {clob}, "vcc", "scc", "memory");\n  if ((threadIdx.x & 63) == 0) o[threadIdx.x >> 6] = r;\n}}')
    src.append('int main() { unsigned* o; (void)hipMalloc(&o, 2 << 20); unsigned h[4];')
    for i, (name, pre, body) in enumerate(sn):
        src.append(f'  (void)hipFuncSetAttribute((const void*)k{i}, hipFuncAttributeMaxDynamicSharedMemorySize, 163840); k{i}<<<1, 256, 163840>>>(o); (void)hipDeviceSynchronize(); (void)hipMemcpy(h, o, 16, hipMemcpyDeviceToHost); printf("%-40s %5u %5u %5u %5u\\n", "{name}", h[0], h[1], h[2], h[3]);')
    src.append('}')
    open(out, "w").write("\n".join(src))
```

```python
from tm import build
J = "\n".join
pre = ("s_mov_b64 vcc, 0\n v_lshrrev_b32 v118, 1, v116\n s_lshl_b32 s56, s44, 11\n s_mov_b32 s57, 0x7f000000\n s_lshl_b32 m0, s44, 12\n"
       "v_and_b32 v9, 63, v8\n v_lshrrev_b32 v10, 4, v9\n v_and_b32 v11, 7, v9\n v_lshlrev_b32 v11, 4, v11\n v_lshl_add_u32 v119, v10, 7, v11\n v_bfe_u32 v10, v9, 3, 1\n v_lshl_add_u32 v119, v10, 3, v119\n v_lshrrev_b32 v117, 2, v116\n v_and_b32 v117, 0x7f, v117")
smf = lambda i: f"v_smfmac_f32_16x16x64_bf16 v[16:19], v[64:67], a[{8*(i%32)}:{8*(i%32)+7}], v112"
ops = {"st4": "buffer_store_dwordx4 v[120:123], v116, s[52:55], s56 offen OFF",
       "st4sc1": "buffer_store_dwordx4 v[120:123], v116, s[52:55], s56 offen OFF sc1",
       "st4half": "s_mov_b32 exec_hi, 0\n buffer_store_dwordx4 v[120:123], v116, s[52:55], s56 offen OFF\n s_mov_b32 exec_hi, -1",
       "st2": "buffer_store_dwordx2 v[120:121], v118, s[52:55], s56 offen OFF",
       "st2p": "buffer_store_dwordx2 v[120:121], v119, s[52:55], s56 offen OFF",
       "st1x": "s_mov_b64 exec, 15\n buffer_store_dword v120, v116, s[52:55], s56 offen OFF\n s_mov_b64 exec, -1",
       "st1oob": "s_mov_b64 exec, 15\n buffer_store_dword v120, v116, s[52:55], s57 offen OFF\n s_mov_b64 exec, -1",
       "ld1": "buffer_load_dword v124, v117, s[52:55], s56 offen OFF sc1",
       "ld1oob": "buffer_load_dword v124, v117, s[52:55], s57 offen OFF sc1",
       "ld4": "buffer_load_dwordx4 v[124:127], v116, s[52:55], s56 offen OFF sc1",
       "dma": "buffer_load_dwordx4 v116, s[52:55], s56 offen OFF sc1 lds",
       "mixst2p": "v_fma_mixhi_f16 v121, v90, v91, 0 op_sel_hi:[0,0,0]\n buffer_store_dwordx2 v[120:121], v119, s[52:55], s56 offen OFF",
       }
S = [("empty", pre, ""), ("32 smf", pre, J(smf(i) for i in range(32)))]
for nm, x in ops.items():
    for per in (16, 4, 2):
        o = []
        for i in range(32):
            o.append(smf(i))
            if i % per == per // 2:
                o.append(x.replace("OFF", f"offset:{(i // per) % 2 * 1024}"))
        S.append((f"32 smf + {32 // per} {nm}", pre, J(o)))
    S.append((f"8 {nm} alone", pre, J(x.replace("OFF", f"offset:{k % 2 * 1024}") for k in range(8))))
build(S)
```
